```python
import torch

def _softmax(x, axis=-1):
    return torch.softmax(x, dim=axis)
def _gelu(x):
    return torch.nn.functional.gelu(x, approximate="tanh")
def _silu(x):
    return torch.nn.functional.silu(x)
def _sigmoid(x):
    return torch.sigmoid(x)
def _layernorm(x, axis=-1, eps=1e-5):
    m = x.mean(dim=axis, keepdim=True)
    v = x.var(dim=axis, keepdim=True, unbiased=False)
    return (x - m) / torch.sqrt(v + eps)
def _scatter_add(tgt, idx, src, axis=0):
    return tgt.clone().index_add_(axis, idx, src)
def _segment_sum(src, seg, n):
    out = torch.zeros((n,) + src.shape[1:], dtype=src.dtype)
    return out.index_add_(0, seg, src)
def _pad(x, pw):
    flat = tuple(v for pair in reversed(pw) for v in pair)
    return torch.nn.functional.pad(x, flat)

kernel_name = 'interleave_layers__sliding_local_dilated__swiglu_ffn__prompt'

def setup_inputs():

    _w = (lambda a: (lambda t: t.to(torch.bfloat16) if t.is_floating_point() else t)(torch.as_tensor(a)))
    def _A_setup():
        B, S, D = 1, 2048, 1024
        return {
            "x": _w((lambda *s: torch.randn(*s, dtype=torch.bfloat16) * 0.05)(B, S, D)),
            "wqkv": _w((lambda *s: torch.randn(*s, dtype=torch.bfloat16) * 0.05)(D, 3 * D)),
            "wo": _w((lambda *s: torch.randn(*s, dtype=torch.bfloat16) * 0.05)(D, D)),
        }
    _A_in = _A_setup()

    def _B_setup():
        B, S, D, F = 1, 2048, 1024, 3584
        return {
            "x": _w((lambda *s: torch.randn(*s, dtype=torch.bfloat16) * 0.05)(B, S, D)),
            "w_gate": _w((lambda *s: torch.randn(*s, dtype=torch.bfloat16) * 0.05)(D, F)),
            "w_up": _w((lambda *s: torch.randn(*s, dtype=torch.bfloat16) * 0.05)(D, F)),
            "w_down": _w((lambda *s: torch.randn(*s, dtype=torch.bfloat16) * 0.05)(F, D)),
        }
    _B_in = _B_setup()

    return {
        "A_x": _A_in["x"],
        "A_wqkv": _A_in["wqkv"],
        "A_wo": _A_in["wo"],
        "B_x": _B_in["x"],
        "B_w_gate": _B_in["w_gate"],
        "B_w_up": _B_in["w_up"],
        "B_w_down": _B_in["w_down"],
    }

def reference(A_x, A_wqkv, A_wo, B_x, B_w_gate, B_w_up, B_w_down):
    def _A_ref(x, wqkv, wo):
        B, S, D = x.shape
        H = 32; Dh = D // H
        W, dil = 8, 2
        qkv = (lambda x, *d: x.permute(*d))((x @ wqkv).reshape(B, S, 3, H, Dh), 2, 0, 3, 1, 4)
        q, k, v = qkv[0], qkv[1], qkv[2]
        scale = Dh ** -0.5
        pos = torch.arange(S)
        off = torch.arange(W) * dil
        idx = pos[:, None] - off[None, :]
        mask = idx >= 0
        idx_c = torch.where(mask, idx, 0).reshape(-1)
        kg = k[:, :, idx_c, :].reshape(B, H, S, W, Dh)
        vg = v[:, :, idx_c, :].reshape(B, H, S, W, Dh)
        logits = torch.einsum("bhsd,bhswd->bhsw", q, kg) * scale
        logits = torch.where(mask[None, None, :, :], logits, -1e9)
        attn = _softmax(logits, axis=-1)
        o = torch.einsum("bhsw,bhswd->bhsd", attn, vg)
        return (lambda x, *d: x.permute(*d))(o, 0, 2, 1, 3).reshape(B, S, D) @ wo

    def _B_ref(x, w_gate, w_up, w_down):
        g = _silu(x @ w_gate)
        u = x @ w_up
        return (g * u) @ w_down

    x = A_x
    x = x + _A_ref(_layernorm(x, axis=-1), A_wqkv, A_wo)
    x = x + _B_ref(_layernorm(x, axis=-1), B_w_gate, B_w_up, B_w_down)
    x = x + _A_ref(_layernorm(x, axis=-1), A_wqkv, A_wo)
    x = x + _B_ref(_layernorm(x, axis=-1), B_w_gate, B_w_up, B_w_down)
    return x
```

```python
class Asm:
    def __init__(self):
        self.lines = []
        self._lab = 0
    def __call__(self, s):
        for l in s.strip('\n').split('\n'):
            self.lines.append('    ' + l.strip() if not l.strip().endswith(':') else l.strip())
    def label(self, base='L'):
        self._lab += 1
        return f'{base}_{self._lab}'
    def text(self):
        return '\n'.join(self.lines) + '\n'

def kernel(name, body, vgpr, sgpr=102, accum=None):
    if accum is None:
        accum = (vgpr + 3) // 4 * 4
    code = f""".text
.globl {name}
.p2align 8
.type {name},@function
{name}:
{body}"""
    desc = f""".section .rodata,"a"
.p2align 6
.amdhsa_kernel {name}
  .amdhsa_next_free_vgpr {vgpr}
  .amdhsa_next_free_sgpr {sgpr}
  .amdhsa_accum_offset {accum}
  .amdhsa_group_segment_fixed_size 0
  .amdhsa_kernarg_size 80
  .amdhsa_user_sgpr_count 2
  .amdhsa_user_sgpr_kernarg_segment_ptr 1
  .amdhsa_system_sgpr_workgroup_id_x 1
  .amdhsa_float_denorm_mode_32 3
.end_amdhsa_kernel
"""
    return code, desc

def module(launches, kernels, header=''):
    out = header
    for k, g, b, lds in launches:
        out += f'; @launch kernel={k} grid=({g},1,1) block=({b},1,1) lds={lds}\n'
    out += '.amdgcn_target "amdgcn-amd-amdhsa--gfx950"\n'
    for c, d in kernels:
        out += c
    for c, d in kernels:
        out += d
    return out
```

```python
import re

def _expand(tok):
    tok = tok.strip()
    neg = tok.lstrip('-')
    if neg.startswith('abs(') or neg.startswith('|'):
        neg = neg.replace('abs(', '').replace(')', '').replace('|', '')
    tok = neg
    m = re.fullmatch(r'([vas])\[(\d+):(\d+)\]', tok)
    if m:
        return [f'{m.group(1)}{i}' for i in range(int(m.group(2)), int(m.group(3)) + 1)]
    if re.fullmatch(r'[vas]\d+', tok):
        return [tok]
    if tok in ('vcc', 'exec', 'm0', 'scc'):
        return [tok]
    if tok in ('vcc_lo', 'vcc_hi'): return ['vcc']
    if tok in ('exec_lo', 'exec_hi'): return ['exec']
    return []

TRANS = ('v_exp_f32', 'v_log_f32', 'v_rcp_f32', 'v_rsq_f32', 'v_sqrt_f32', 'v_sin_f32', 'v_cos_f32', 'v_rcp_iflag_f32')

class Ins:
    __slots__ = ('text', 'op', 'kind', 'w', 'r', 'tok_set', 'tok_need', 'srcc', 'ab', 'data', 'dpp')
    def __init__(self, text, tok_set=None, tok_need=None):
        self.text = text
        self.tok_set = tok_set
        self.tok_need = tok_need
        self.srcc = []; self.ab = []; self.data = []; self.dpp = False
        t = text.split(';')[0].strip()
        parts = t.split(None, 1)
        op = parts[0]; self.op = op
        rest = parts[1] if len(parts) > 1 else ''
        ops = [x.strip() for x in rest.split(',')] if rest else []
        mods = ''
        if ops:
            joined = rest
            m = re.search(r'\s(op_sel|op_sel_hi|neg_lo|neg_hi|offset|offset0|offset1|offen|idxen|lds|sc0|sc1|nt|row_|quad_perm|bank_mask|bound_ctrl|dst_sel|src0_sel|src1_sel|dst_unused|bitop3|clamp|mul:|div:|glc|cbsz|abid|blgp|wave_|fi:)', joined)
            if m:
                mods = joined[m.start():]; joined = joined[:m.start()]
            ops = [x.strip() for x in joined.split(',')]
        R = [_expand(o) for o in ops]
        flat = lambda L: [x for l in L for x in l]
        w, r = [], []
        base = re.sub(r'_(e32|e64|dpp|sdwa)$', '', op)
        if op.startswith('v_mfma'):
            kind = 'mfma'; w = R[0]; r = flat(R[1:]); self.ab = R[1] + R[2]; self.srcc = R[3]
        elif op.startswith('ds_read') or op.startswith('ds_bpermute') or op.startswith('ds_swizzle') or op.startswith('ds_permute'):
            kind = 'ds'; w = R[0]; r = flat(R[1:])
        elif op.startswith('ds_'):
            kind = 'ds'; r = flat(R)
        elif op.startswith('buffer_load') or op.startswith('global_load'):
            if ' lds' in mods or 'load_lds' in op:
                kind = 'vm'; r = flat(R) + ['m0']
            else:
                kind = 'vm'; w = R[0]; r = flat(R[1:])
        elif op.startswith('buffer_store'):
            kind = 'vm'; r = flat(R); self.data = R[0]
        elif op.startswith('global_store'):
            kind = 'vm'; r = flat(R); self.data = R[1]
        elif op.startswith('buffer_atomic'):
            kind = 'vm'; r = flat(R)
            if 'sc0' in mods: w = R[0]
        elif op.startswith('global_atomic'):
            kind = 'vm'
            if 'sc0' in mods: w = R[0]; r = flat(R[1:])
            else: r = flat(R)
        elif op in ('buffer_inv', 'buffer_wbl2'):
            kind = 'vm'
        elif op.startswith('s_load') or op.startswith('s_buffer_load') or op in ('s_memtime', 's_memrealtime'):
            kind = 'smem'; w = R[0]; r = flat(R[1:])
        elif op in ('s_waitcnt', 's_nop', 's_barrier', 's_setprio', 's_sleep', 's_endpgm') or op.startswith('s_cbranch') or op == 's_branch':
            kind = 'ctl'
        elif op.startswith('s_cmp') or op.startswith('s_bitcmp'):
            kind = 'salu'; r = flat(R); w = ['scc']
        elif op.startswith('s_'):
            kind = 'salu'; w = R[0] + ['scc']; r = flat(R[1:])
            if 'saveexec' in op: w += ['exec']; r += ['exec']
            if base in ('s_addk_i32', 's_mulk_i32'): r += R[0]
        elif op.startswith('v_'):
            kind = 'valu'
            if base.startswith('v_permlane') and 'swap' in base or base == 'v_swap_b32':
                w = R[0] + R[1]; r = R[0] + R[1]
            elif base in ('v_add_co_u32', 'v_sub_co_u32', 'v_addc_co_u32', 'v_subb_co_u32'):
                w = R[0] + R[1]; r = flat(R[2:])
            else:
                w = R[0]; r = flat(R[1:])
                if base in ('v_fmac_f32', 'v_dot2c_f32_bf16', 'v_pk_fmac_f16', 'v_writelane_b32'): r += R[0]
                if base.startswith('v_cndmask') and len(ops) == 3: r += ['vcc']
            if base.startswith('v_cmpx'): w += ['exec']
            if op.endswith('_dpp') or 'row_' in mods or 'quad_perm' in mods:
                self.dpp = True; r += R[0]
        else:
            raise ValueError('unknown instruction ' + text)
        self.kind = kind; self.w = w; self.r = r

class Prog:
    def __init__(self):
        self.items = []
    def i(self, text, tok_set=None, tok_need=None):
        for l in text.strip('\n').split('\n'):
            l = l.strip()
            if not l or l.startswith(';'): continue
            if l.endswith(':') or l.startswith('.'):
                self.items.append(('raw', l))
            else:
                self.items.append(Ins(l, tok_set, tok_need))
    __call__ = i
    def raw(self, t): self.items.append(('raw', t))
    def loop_begin(self, label, align=True):
        if align: self.items.append(('raw', '.p2align 6'))
        self.items.append(('loop_begin', label))
    def loop_end(self): self.items.append(('loop_end',))
    def fence(self):
        self.items.append(('fence',))

    def _linear(self, reps=3):
        out = []; i = 0; n = len(self.items)
        while i < n:
            it = self.items[i]
            if isinstance(it, tuple) and it[0] == 'loop_begin':
                j = i + 1
                while not (isinstance(self.items[j], tuple) and self.items[j][0] == 'loop_end'): j += 1
                for _ in range(reps): out += list(range(i + 1, j))
                i = j + 1
            else:
                out.append(i); i += 1
        return out

    def _waits(self):
        waits = {}
        changed = True
        while changed:
            changed = False
            for reps in (1, 3):
                vmq, lgq = [], []
                for idx in self._linear(reps):
                    it = self.items[idx]
                    if isinstance(it, tuple): continue
                    cur = waits.get(idx, [None, None])
                    def apply(q, n):
                        if n is not None and len(q) > n: del q[:len(q) - n]
                    apply(vmq, cur[0]); apply(lgq, cur[1])
                    if it.op == 's_waitcnt':
                        m = re.search(r'vmcnt\((\d+)\)', it.text)
                        if m: apply(vmq, int(m.group(1)))
                        m = re.search(r'lgkmcnt\((\d+)\)', it.text)
                        if m:
                            c = int(m.group(1))
                            if c == 0 or not any(e[2] for e in lgq): apply(lgq, c)
                        continue
                    touched = set(it.r) | set(it.w)
                    need = set(it.tok_need or [])
                    nv = None
                    for k in range(len(vmq) - 1, -1, -1):
                        regs, tok, _ = vmq[k]
                        hit = (regs & touched) if not (it.kind == 'vm' and not (regs & set(it.r))) else False
                        if hit or (tok is not None and tok in need):
                            nv = len(vmq) - 1 - k; break
                    nl = None
                    for k in range(len(lgq) - 1, -1, -1):
                        regs, tok, sm = lgq[k]
                        hit = (regs & touched) if not (it.kind == 'ds' and not sm and not (regs & set(it.r))) else False
                        if hit or (tok is not None and tok in need):
                            nl = len(lgq) - 1 - k
                            if any(e[2] for e in lgq): nl = 0
                            break
                    if nv is not None:
                        nv = min(nv, 63)
                        cur = [nv if cur[0] is None else min(nv, cur[0]), cur[1]]; waits[idx] = cur; changed = True
                        apply(vmq, nv)
                    if nl is not None:
                        nl = min(nl, 15)
                        cur = [cur[0], nl if cur[1] is None else min(nl, cur[1])]; waits[idx] = cur; changed = True
                        apply(lgq, nl)
                    if it.kind == 'vm':
                        vmq.append((set(it.w), it.tok_set, False))
                    elif it.kind == 'ds':
                        lgq.append((set(it.w), it.tok_set, False))
                    elif it.kind == 'smem':
                        lgq.append((set(it.w), it.tok_set, True))
        return waits

    @staticmethod
    def _need(p, c):
        n = 0
        pw = set(p.w); cr = set(c.r); cw = set(c.w)
        vec = lambda s: {x for x in s if x[0] in 'va' and x != 'vcc'}
        sca = lambda s: {x for x in s if (x[0] == 's' and x != 'scc') or x == 'vcc'}
        if p.kind == 'valu':
            pv = vec(pw); ps = sca(pw)
            if c.kind == 'mfma' and pv & cr: n = max(n, 2)
            if c.kind == 'valu':
                if c.op.startswith('v_permlane') and pv & cr: n = max(n, 2)
                if c.dpp and pv & cr: n = max(n, 2)
                if (c.op.startswith('v_readfirstlane') or c.op.startswith('v_readlane')) and pv & cr: n = max(n, 1)
                if ps & cr: n = max(n, 2)
                if (c.op.startswith('v_readlane') or c.op.startswith('v_writelane')) and ps & cr: n = max(n, 4)
                if p.op.replace('_e32', '').replace('_e64', '') in TRANS and pv & cr: n = max(n, 1)
                if ('sdwa' in p.op or 'op_sel' in p.text and not p.op.startswith('v_pk')) and pv & (cr | cw): n = max(n, 1)
            if c.kind == 'vm' and ps & cr: n = max(n, 5)
            if c.kind in ('salu', 'smem', 'ctl') and ps & cr: n = max(n, 1)
            if 'exec' in pw:
                if c.kind == 'mfma': n = max(n, 4)
                if c.kind == 'valu': n = max(n, 5)
        elif p.kind == 'mfma':
            big = '32x32' in p.op
            if c.kind == 'mfma':
                if pw & set(c.ab): n = max(n, 12 if big else 8)
                if pw & set(c.srcc) and c.srcc != p.w: n = max(n, 10 if big else 6)
                if pw & cw and not (pw & set(c.srcc)): n = max(n, 12 if big else 8)
            elif c.kind in ('valu', 'vm', 'ds'):
                if pw & (cr | cw): n = max(n, 12 if big else 8)
            if c.kind == 'valu' and set(p.srcc) & cw: n = max(n, 7 if big else 3)
        elif p.kind == 'salu':
            if 'm0' in pw and c.kind == 'vm' and 'm0' in cr: n = max(n, 1)
        elif p.kind == 'vm':
            if len(p.data) >= 3 and set(p.data) & cw: n = max(n, 2 if c.kind == 'valu' else 1)
        return n

    def _nops(self, waits):
        nops = {}
        changed = True
        while changed:
            changed = False
            hist = []
            for idx in self._linear(2):
                it = self.items[idx]
                if isinstance(it, tuple): continue
                pre = nops.get(idx, 0) + (1 if idx in waits else 0)
                d = pre; need = 0
                for p, st in reversed(hist):
                    if d >= 20: break
                    if p is not None:
                        k = self._need(p, it)
                        if k > d: need = max(need, k - d)
                    d += st
                if need:
                    nops[idx] = nops.get(idx, 0) + need; changed = True; pre += need
                if pre: hist.append((None, pre))
                st = 1
                if it.op == 's_nop': st = int(it.text.split()[1]) + 1
                hist.append((it, st))
                if len(hist) > 64: del hist[:32]
        return nops

    def finish(self):
        waits = self._waits()
        nops = self._nops(waits)
        out = []
        for idx, it in enumerate(self.items):
            if isinstance(it, tuple):
                if it[0] == 'raw': out.append(it[1])
                elif it[0] == 'loop_begin': out.append(it[1] + ':')
                continue
            n = nops.get(idx, 0)
            while n > 0:
                k = min(n, 16); out.append(f'    s_nop {k-1}'); n -= k
            if idx in waits:
                v, l = waits[idx]
                s = '    s_waitcnt'
                if v is not None: s += f' vmcnt({v})'
                if l is not None: s += f' lgkmcnt({l})'
                out.append(s)
            out.append('    ' + it.text)
        return '\n'.join(out) + '\n'
```

```python
import sys, os
sys.path.insert(0, os.path.dirname(os.path.abspath(__file__)))
from sched import Prog
from asmlib import kernel, module

MB = 1 << 20
XF0, O1, X1, X2, O2, X3 = 0, 4*MB, 8*MB, 12*MB, 16*MB, 20*MB
H1, H2 = 24*MB, 40*MB
ST = [56*MB + i * 256*1024 for i in range(4)]
CS = 58*MB
CSQ, CSG, CSU = CS, CS + 3072*4, CS + (3072+3584)*4
TS = 60*MB
KA = dict(x=0, wqkv=8, wo=16, wg=32, wu=40, wd=48, out=56, ws=72)
LOG2E = 1.4426950408889634
import struct
def f32(x): return '0x%08x' % struct.unpack('<I', struct.pack('<f', x))[0]
MFMA = 'v_mfma_f32_16x16x32_bf16'

class Opt:
    stamps = False
    st_flags = ''

def rr(k, a, n): return f'{k}[{a}:{a+n-1}]' if n > 1 else f'{k}{a}'

def srd(p, d, ptr, off, size):
    if off:
        p(f's_add_u32 s{d}, s{ptr}, {off}\ns_addc_u32 s{d+1}, s{ptr+1}, 0')
    else:
        p(f's_mov_b32 s{d}, s{ptr}\ns_mov_b32 s{d+1}, s{ptr+1}')
    p(f's_mov_b32 s{d+2}, {size}\ns_mov_b32 s{d+3}, 0x20000')

def stamp(p, i):
    if Opt.stamps: p(f's_memrealtime s[{80+2*i}:{81+2*i}]')

def stamp_out(p, kidx, n, wsptr):
    if not Opt.stamps: return
    p('s_waitcnt vmcnt(0)')
    p(f's_memrealtime s[{80+2*n}:{81+2*n}]')
    p('s_waitcnt lgkmcnt(0)')
    srd(p, 76, wsptr, TS + kidx * 8192, 8192)
    for i in range(8):
        p(f'v_mov_b32 v{4+i}, s{80+2*i}' if i <= n else f'v_mov_b32 v{4+i}, 0')
    p('s_lshl_b32 s75, s2, 5\nv_mov_b32 v12, s75')
    p('v_cmp_eq_u32 vcc, 0, v0\ns_and_saveexec_b64 s[74:75], vcc')
    p('buffer_store_dwordx4 v[4:7], v12, s[76:79], 0 offen')
    p('buffer_store_dwordx4 v[8:11], v12, s[76:79], 0 offen offset:16')

def head(p, name, ptrs):
    stamp(p, 0)
    p(f's_cmp_ge_u32 s2, 256')
    p.raw(f'    s_cbranch_scc1 {name}_end')
    for s, n in ptrs:
        p(f's_load_dwordx2 s[{s}:{s+1}], s[0:1], {KA[n]}')
    p('v_lshrrev_b32 v2, 6, v0\nv_and_b32 v1, 63, v0\nv_readfirstlane_b32 s3, v2')
    p('s_and_b32 s4, s2, 7\ns_lshr_b32 s5, s2, 3')

def interleave(mf, fill, first=0, last=None):
    n = len(mf); last = n if last is None else last
    slots = [[] for _ in range(n)]
    for lst, a, b in fill:
        k = len(lst)
        for i, f in enumerate(lst):
            pos = a + (i * (b - a)) // k
            slots[min(pos, n - 1)].append(f)
    out = []
    for m, s in zip(mf, slots):
        out.append(m)
        out += s
    return out

def emit(p, seq):
    for x in seq:
        if isinstance(x, (list, tuple)):
            for y in x:
                if isinstance(y, dict): p(y['t'], tok_set=y.get('set'), tok_need=y.get('need'))
                else: p(y)
        elif isinstance(x, dict): p(x['t'], tok_set=x.get('set'), tok_need=x.get('need'))
        else: p(x)

def stats_loads(p, vaddr, srd_, soff, tmp):
    for j in range(16):
        p(f's_mov_b32 s{soff}, {j*16384}')
        p(f'buffer_load_dwordx2 v[{tmp+2*j}:{tmp+2*j+1}], v{vaddr}, s[{srd_}:{srd_+3}], s{soff} offen')

def stats_reduce(p, tmp):
    n = 16
    while n > 1:
        n //= 2
        for j in range(n):
            p(f'v_pk_add_f32 v[{tmp+2*j}:{tmp+2*j+1}], v[{tmp+2*j}:{tmp+2*j+1}], v[{tmp+2*(j+n)}:{tmp+2*(j+n)+1}]')
    p(f'v_mul_f32 v{tmp}, {f32(-1/1024)}, v{tmp}')
    p(f'v_mul_f32 v{tmp+1}, {f32(1/1024)}, v{tmp+1}')
    p(f'v_fma_f32 v{tmp+1}, -v{tmp}, v{tmp}, v{tmp+1}')
    p(f'v_max_f32 v{tmp+1}, 0, v{tmp+1}')
    p(f'v_add_f32 v{tmp+1}, {f32(1e-5)}, v{tmp+1}')
    p(f'v_rsq_f32 v{tmp+2}, v{tmp+1}')

def rowmajor_addr(p, vd, vt, s_team, s_wave, s_j, m, st):
    p(f's_lshr_b32 s{st}, s{s_team}, 1\ns_lshl_b32 s{st}, s{st}, 8')
    p(f's_and_b32 s{st+1}, s{s_team}, 1\ns_add_u32 s{st}, s{st}, s{st+1}')
    p(f's_lshl_b32 s{st+1}, s{s_wave}, 6\ns_add_u32 s{st}, s{st}, s{st+1}')
    p(f's_add_u32 s{st}, s{st}, {32*m}\ns_lshl_b32 s{st}, s{st}, 11')
    p(f's_lshl_b32 s{st+1}, s{s_j}, 7\ns_add_u32 s{st}, s{st}, s{st+1}')
    p(f'v_and_b32 v{vd}, 15, v1\nv_lshlrev_b32 v{vd}, 12, v{vd}')
    p(f'v_bfe_u32 v{vt}, v1, 4, 1\nv_lshl_add_u32 v{vd}, v{vt}, 5, v{vd}')
    p(f'v_bfe_u32 v{vt}, v1, 5, 1\nv_lshl_add_u32 v{vd}, v{vt}, 4, v{vd}')
    p(f'v_add_u32 v{vd}, s{st}, v{vd}')

def stats_store(p, S, vt, s_team, s_wave, s_j, srd_, st):
    p(f'v_permlane16_swap_b32 v{S[0]}, v{S[2]}')
    p(f'v_permlane16_swap_b32 v{S[1]}, v{S[3]}')
    p(f'v_add_f32 v{S[0]}, v{S[0]}, v{S[2]}\nv_add_f32 v{S[1]}, v{S[1]}, v{S[3]}')
    p(f's_lshl_b32 s{st}, s{s_j}, 14\ns_lshl_b32 s{st+1}, s{s_team}, 10\ns_add_u32 s{st}, s{st}, s{st+1}')
    p(f's_lshl_b32 s{st+1}, s{s_wave}, 8\ns_add_u32 s{st}, s{st}, s{st+1}')
    p(f'v_permlane32_swap_b32 v{S[0]}, v{S[1]}')
    p(f'v_and_b32 v{vt}, 31, v1\nv_lshlrev_b32 v{vt}, 3, v{vt}\nv_lshrrev_b32 v{S[2]}, 5, v1\nv_lshl_add_u32 v{vt}, v{S[2]}, 2, v{vt}')
    p(f'v_add_f32 v{S[0]}, v{S[0]}, v{S[1]}')
    p(f'buffer_store_dword v{S[0]}, v{vt}, s[{srd_}:{srd_+3}], s{st} offen {Opt.st_flags}')

def map_proj(p):
    p('s_lshr_b32 s6, s4, 1\ns_lshl_b32 s6, s6, 2\ns_and_b32 s7, s5, 3\ns_add_u32 s6, s6, s7')
    p('s_and_b32 s7, s4, 1\ns_lshl_b32 s7, s7, 3\ns_lshr_b32 s8, s5, 2\ns_add_u32 s7, s7, s8')

def k_pre(name, kidx):
    p = Prog()
    head(p, name, [(10, 'x'), (12, 'ws'), (14, 'wqkv'), (16, 'wg'), (18, 'wu')])
    map_proj(p)
    rowmajor_addr(p, 4, 6, 6, 3, 7, 0, 20)
    p('v_add_u32 v5, 0x10000, v4')
    srd(p, 24, 10, 0, 4*MB)
    srd(p, 28, 12, XF0, 4*MB)
    srd(p, 32, 12, ST[0], 256*1024)
    for m in range(2):
        for b in range(2):
            r = 8 + (m*2+b)*4
            p(f'buffer_load_dwordx4 v[{r}:{r+3}], v{4+m}, s[24:27], 0 offen offset:{64*b}')
    p('s_lshl_b32 s20, s7, 18\ns_lshl_b32 s21, s6, 13\ns_add_u32 s20, s20, s21\ns_lshl_b32 s21, s3, 11\ns_add_u32 s20, s20, s21')
    p('s_add_u32 s21, s20, 0x20000')
    p('v_lshlrev_b32 v7, 4, v1')
    for m in range(2):
        p(f'v_mov_b32 v{40+4*m}, 0\nv_mov_b32 v{41+4*m}, 0\nv_mov_b32 v{42+4*m}, 0\nv_mov_b32 v{43+4*m}, 0')
        for b in range(2):
            r = 8 + (m*2+b)*4
            p(f'v_permlane16_swap_b32 v{r}, v{r+2}\nv_permlane16_swap_b32 v{r+1}, v{r+3}')
            p(f'buffer_store_dwordx4 v[{r}:{r+3}], v7, s[28:31], s{20+b} offen offset:{1024*m} {Opt.st_flags}')
            for d in range(4):
                p(f'v_lshlrev_b32 v30, 16, v{r+d}\nv_and_b32 v31, 0xffff0000, v{r+d}')
                p(f'v_pk_add_f32 v[{40+4*m}:{41+4*m}], v[{40+4*m}:{41+4*m}], v[30:31]')
                p(f'v_pk_fma_f32 v[{42+4*m}:{43+4*m}], v[30:31], v[30:31], v[{42+4*m}:{43+4*m}]')
        p(f'v_add_f32 v{40+4*m}, v{40+4*m}, v{41+4*m}\nv_add_f32 v{42+4*m}, v{42+4*m}, v{43+4*m}')
    stats_store(p, [40, 42, 44, 46], 30, 6, 3, 7, 32, 22)
    p('s_cmp_ge_u32 s2, 160')
    p.raw(f'    s_cbranch_scc1 {name}_fin')
    p('s_cmp_lt_u32 s2, 104\ns_cselect_b32 s36, s16, s18\ns_cselect_b32 s37, s17, s19\ns_cselect_b32 s40, 48, 104')
    p('s_cmp_lt_u32 s2, 48\ns_cselect_b32 s36, s14, s36\ns_cselect_b32 s37, s15, s37\ns_cselect_b32 s40, 0, s40')
    p('s_movk_i32 s41, 7168\ns_cselect_b32 s41, 6144, s41')
    p('s_lshl_b32 s38, s41, 10\ns_mov_b32 s39, 0x20000')
    p('s_sub_u32 s40, s2, s40\ns_lshl_b32 s40, s40, 7')
    p('s_lshl_b32 s42, s3, 8\ns_mul_i32 s42, s42, s41\ns_add_u32 s40, s40, s42')
    p('s_lshl_b32 s42, s41, 3')
    p('v_lshrrev_b32 v4, 3, v1\nv_mul_lo_u32 v4, v4, s41\nv_and_b32 v5, 7, v1\nv_lshl_add_u32 v4, v5, 4, v4')
    for i in range(32):
        p(f'buffer_load_dwordx4 v[{64+4*i}:{67+4*i}], v4, s[36:39], s40 offen')
        p('s_add_u32 s40, s40, s42')
    p('v_and_b32 v5, 15, v1\nv_and_b32 v6, 1, v1\nv_lshlrev_b32 v6, 4, v6\nv_mov_b32 v7, 0x3f80\nv_lshlrev_b32 v6, v6, v7')
    p('v_lshrrev_b32 v5, 1, v5')
    for d in range(4):
        p(f'v_cmp_eq_u32 vcc, {d}, v5\nv_cndmask_b32 v{48+d}, 0, v6, vcc')
    for i in range(32):
        p(f'{MFMA} v[52:55], v[48:51], v[{64+4*i}:{67+4*i}], ' + ('0' if i == 0 else 'v[52:55]'))
    for d in range(4):
        p(f'v_add_f32_dpp v{56+d}, v{52+d}, v{52+d} row_ror:8 row_mask:0xf bank_mask:0xf')
    p('v_and_b32 v5, 7, v1\nv_lshlrev_b32 v5, 5, v5\nv_bfe_u32 v6, v1, 4, 1\nv_lshl_add_u32 v5, v6, 4, v5')
    p('v_bfe_u32 v6, v1, 5, 1\nv_lshl_add_u32 v5, v6, 10, v5')
    p('s_lshl_b32 s42, s3, 8\nv_add_u32 v5, s42, v5')
    p('ds_write_b128 v5, v[56:59]')
    p('s_waitcnt lgkmcnt(0)\ns_barrier')
    p('v_lshlrev_b32 v5, 2, v1')
    for w in range(4): p(f'ds_read_b32 v{8+w}, v5 offset:{256*w}')
    srd(p, 44, 12, CS, 10240*4)
    p('v_add_f32 v8, v8, v9\nv_add_f32 v10, v10, v11\nv_add_f32 v8, v8, v10')
    p('s_lshl_b32 s42, s2, 8')
    p(f'buffer_store_dword v8, v5, s[44:47], s42 offen {Opt.st_flags}')
    p.raw(f'{name}_fin:')
    stamp_out(p, kidx, 1, 12)
    p.raw(f'{name}_end:')
    p('s_endpgm')
    return kernel(name, p.finish(), 192), 4096

def k_proj(name, kidx, K, a_off, wname, res_off, out_off, st_off):
    p = Prog()
    final = out_off is None
    head(p, name, [(10, 'ws'), (12, wname)] + ([(14, 'out')] if final else []))
    map_proj(p)
    R = 8; STG = 8320; nst = K // 64
    ACC = 16; AR = 48; RES = AR + R*16
    vA, vB0, vB1, vR = 4, 5, 6, 7
    p('s_lshl_b32 s20, s6, 13\ns_lshl_b32 s21, s3, 11\ns_add_u32 s20, s20, s21')
    p(f'v_lshl_add_u32 v{vA}, v1, 4, s20')
    p('v_bfe_u32 v8, v1, 3, 1\nv_lshrrev_b32 v9, 4, v1\nv_lshl_add_u32 v8, v9, 3, v8')
    p('s_lshl_b32 s21, s3, 1\nv_add_u32 v8, s21, v8\nv_lshlrev_b32 v8, 11, v8')
    p(f'v_and_b32 v9, 7, v1\nv_lshl_add_u32 v8, v9, 4, v8\ns_lshl_b32 s21, s7, 7\nv_add_u32 v{vB0}, s21, v8')
    p(f'v_add_u32 v{vB1}, {32*2048-1024}, v{vB0}')
    p('v_bfe_u32 v8, v1, 3, 2\nv_mul_u32_u24 v8, 2080, v8')
    p('v_bfe_u32 v9, v1, 2, 1\nv_lshl_add_u32 v8, v9, 7, v8\nv_bfe_u32 v9, v1, 5, 1\nv_lshl_add_u32 v8, v9, 8, v8')
    p(f'v_and_b32 v9, 3, v1\nv_lshl_add_u32 v{vR}, v9, 3, v8')
    p('s_mul_i32 s22, s3, 2080')
    p('s_mov_b32 s23, 0\ns_mov_b32 s24, 0x20000\ns_mov_b32 s25, 0')
    srd(p, 28, 10, a_off, K*2048*2)
    srd(p, 32, 12, 0, K*2048)
    def loadA(s):
        o = []
        for kk in range(2):
            for m in range(2):
                r = AR + (s % R)*16 + (kk*2+m)*4
                o.append([f'buffer_load_dwordx4 v[{r}:{r+3}], v{vA}, s[28:31], s{23+kk} offen offset:{1024*m}'])
            o[-1].append(f's_add_u32 s{23+kk}, s{23+kk}, 0x40000')
        return o
    def loadB(s):
        t = f'B{s%R}'
        return [[f's_add_u32 m0, s22, {(s%R)*STG}', {'t': f'buffer_load_dwordx4 v{vB0}, s[32:35], s25 offen lds', 'set': t}],
                [{'t': f'buffer_load_dwordx4 v{vB1}, s[32:35], s25 offen offset:1024 lds', 'set': t}, 's_add_u32 s25, s25, 0x20000']]
    def reads(s):
        o = []
        for kk in range(2):
            for n in range(4):
                for h in range(2):
                    r = (s % 2)*32 + (kk*4+n)*4 + 2*h
                    o.append(f'ds_read_b64_tr_b16 a[{r}:{r+1}], v{vR} offset:{(s%R)*STG + kk*1024 + h*512 + n*32}')
        return o
    def mfmas(s, first=False):
        o = []
        for kk in range(2):
            for n in range(4):
                for m in range(2):
                    c = ACC + (m*4+n)*4; b = (s % 2)*32 + (kk*4+n)*4; a = AR + (s % R)*16 + (kk*2+m)*4
                    o.append(f'{MFMA} v[{c}:{c+3}], a[{b}:{b+3}], v[{a}:{a+3}], v[{c}:{c+3}]')
        return o
    stamp(p, 1)
    for s in range(R):
        emit(p, loadB(s))
        if s < R-1: emit(p, loadA(s))
    for c in range(ACC, ACC+32): p(f'v_mov_b32 v{c}, 0')
    srd(p, 36, 10, res_off, 4*MB)
    p('s_lshl_b32 s26, s7, 18\ns_add_u32 s27, s26, 0x20000')
    if final:
        srd(p, 40, 14, 0, 4*MB)
        rowmajor_addr(p, 10, 9, 6, 3, 7, 0, 44)
        p('v_add_u32 v11, 0x10000, v10')
    else:
        srd(p, 40, 10, out_off, 4*MB)
        srd(p, 44, 10, st_off, 256*1024)
    p('s_barrier', tok_need=['B0'])
    stamp(p, 2)
    emit(p, reads(0))
    def stage(s, lA, lB, rd, extra=[]):
        p('s_waitcnt lgkmcnt(0)')
        if rd: p('s_barrier', tok_need=[f'B{(s+1)%R}'])
        vm = []
        a = loadA(s+R-1) if lA else []; b = loadB(s+R) if lB else []
        vm = b[:1] + a[:2] + b[1:] + a[2:] + extra
        emit(p, interleave(mfmas(s), [(reads(s+1) if rd else [], 0, 13), (vm, 0, 16)]))
    nloop = (nst - R) // R
    p(f's_mov_b32 s48, {nloop}')
    p.loop_begin(f'{name}_loop')
    for s in range(R): stage(s, True, True, True)
    p('s_sub_u32 s48, s48, 1\ns_cmp_lg_u32 s48, 0')
    p(f's_cbranch_scc1 {name}_loop')
    p.loop_end()
    resl = [f'buffer_load_dwordx4 v[{RES+(m*2+b)*4}:{RES+(m*2+b)*4+3}], v{vA}, s[36:39], s{26+b} offen offset:{1024*m}' for m in range(2) for b in range(2)]
    for s in range(R): stage(s, s == 0, False, s < R-1, resl if s == 1 else [])
    stamp(p, 3)
    T = AR
    for m in range(2):
        s1, s2 = T+40+4*m, T+42+4*m
        for b in range(2):
            r = RES + (m*2+b)*4; o = T + (m*2+b)*4
            for d in range(4):
                c = ACC + (m*4 + 2*b + (d >> 1))*4 + (d & 1)*2
                t = T + 20 + 2*(d & 1)
                p(f'v_lshlrev_b32 v{t}, 16, v{r+d}\nv_and_b32 v{t+1}, 0xffff0000, v{r+d}')
                p(f'v_pk_add_f32 v[{c}:{c+1}], v[{c}:{c+1}], v[{t}:{t+1}]')
                p(f'v_cvt_pk_bf16_f32 v{o+d}, v{c}, v{c+1}')
            if final:
                p(f'v_permlane16_swap_b32 v{o}, v{o+2}\nv_permlane16_swap_b32 v{o+1}, v{o+3}')
                p(f'buffer_store_dwordx4 v[{o}:{o+3}], v{10+m}, s[40:43], 0 offen offset:{64*b}')
            else:
                p(f'buffer_store_dwordx4 v[{o}:{o+3}], v{vA}, s[40:43], s{26+b} offen offset:{1024*m} {Opt.st_flags}')
    if not final:
        for m in range(2):
            s1, s2 = T+40+4*m, T+42+4*m
            for q in range(8):
                c = ACC + m*16 + 2*q
                if q == 0:
                    p(f'v_pk_mul_f32 v[{s2}:{s2+1}], v[{c}:{c+1}], v[{c}:{c+1}]')
                else:
                    p(f'v_pk_fma_f32 v[{s2}:{s2+1}], v[{c}:{c+1}], v[{c}:{c+1}], v[{s2}:{s2+1}]')
                    src = s1 if q > 1 else ACC + m*16
                    p(f'v_pk_add_f32 v[{s1}:{s1+1}], v[{src}:{src+1}], v[{c}:{c+1}]')
            p(f'v_add_f32 v{s1}, v{s1}, v{s1+1}\nv_add_f32 v{s2}, v{s2}, v{s2+1}')
        stats_store(p, [T+40, T+42, T+44, T+46], T+30, 6, 3, 7, 44, 50)
    stamp(p, 4)
    stamp_out(p, kidx, 5, 10)
    p.raw(f'{name}_end:')
    p('s_endpgm')
    arch = RES + 16
    return kernel(name, p.finish(), arch + 64, accum=arch), max(R*STG, 81920+256)

def k_gu(name, kidx, x_off, st_off, h_off):
    p = Prog()
    head(p, name, [(10, 'ws'), (12, 'wg'), (14, 'wu')])
    S = 8; STG = 16896; RA = 4
    TAB = S*STG
    CSL = TAB + 4096
    ACC = 32; AR = 128
    vA = [4, 5]; vB = [6, 7, 8, 9]; vRo = [10, 11]; vRs = [12, 13]
    p('s_and_b32 s6, s4, 1\ns_lshl_b32 s6, s6, 2\ns_and_b32 s7, s5, 3\ns_add_u32 s6, s6, s7')
    p('s_lshr_b32 s7, s4, 1\ns_lshl_b32 s7, s7, 3\ns_lshr_b32 s8, s5, 2\ns_add_u32 s7, s7, s8')
    p('s_and_b32 s8, s7, 1\ns_lshr_b32 s9, s7, 1')
    p('s_lshl_b32 s20, s6, 14\ns_lshl_b32 s21, s3, 12\ns_add_u32 s20, s20, s21\ns_lshl_b32 s21, s8, 11\ns_add_u32 s20, s20, s21')
    p(f'v_lshl_add_u32 v{vA[0]}, v1, 4, s20\nv_xor_b32 v{vA[1]}, 2048, v{vA[0]}')
    p('s_mul_i32 s16, s9, 448\ns_mul_i32 s21, s8, 192\ns_add_u32 s16, s16, s21')
    p('s_and_b32 s21, s3, 1\ns_mul_i32 s21, s21, 28672\ns_add_u32 s21, s21, s16')
    p('v_lshrrev_b32 v14, 4, v1\nv_mul_u32_u24 v14, 57344, v14\nv_and_b32 v15, 15, v1\nv_lshl_add_u32 v14, v15, 4, v14')
    p(f'v_add_u32 v{vB[0]}, s21, v14')
    for i in range(1, 4): p(f'v_add_u32 v{vB[i]}, {i*(7168-1056)}, v{vB[0]}')
    p('v_bfe_u32 v14, v1, 2, 3\nv_mul_u32_u24 v14, 1056, v14\nv_bfe_u32 v15, v1, 5, 1\nv_lshl_add_u32 v14, v15, 8, v14')
    p('v_and_b32 v15, 3, v1\nv_lshl_add_u32 v14, v15, 3, v14')
    p('s_lshl_b32 s17, s8, 6\ns_xor_b32 s18, s8, 1\ns_mul_i32 s18, s18, 192')
    p(f'v_add_u32 v{vRo[0]}, s17, v14\nv_add_u32 v{vRs[0]}, s18, v14')
    p(f'v_add_u32 v{vRo[1]}, {4*STG}, v{vRo[0]}\nv_add_u32 v{vRs[1]}, {4*STG}, v{vRs[0]}')
    p('s_mul_i32 s22, s3, 4224\ns_mov_b32 s23, 0\ns_mov_b32 s25, 0')
    p('s_lshl_b32 s21, s6, 11\nv_lshl_add_u32 v16, v0, 3, s21')
    srd(p, 28, 10, x_off, 4*MB)
    p('s_cmp_lt_u32 s3, 2\ns_cselect_b32 s32, s12, s14\ns_cselect_b32 s33, s13, s15')
    p(f's_mov_b32 s34, {1024*7168}\ns_mov_b32 s35, 0x20000')
    srd(p, 36, 10, st_off, 256*1024)
    srd(p, 44, 10, CSG, 7168*4)
    def loadA(s):
        o = []
        for m in range(4):
            r = AR + (s % RA)*16 + m*4
            o.append([f'buffer_load_dwordx4 a[{r}:{r+3}], v{vA[m>>1]}, s[28:31], s23 offen offset:{1024*(m&1)}'])
        o[-1].append('s_add_u32 s23, s23, 0x20000')
        return o
    def loadB(s):
        t = f'B{s%S}'
        o = [[{'t': f'buffer_load_dwordx4 v{vB[i]}, s[32:35], s25 offen offset:{1056*i} lds', 'set': t}] for i in range(4)]
        o[0].insert(0, f's_add_u32 m0, s22, {(s%S)*STG}')
        o[-1].append(f's_add_u32 s25, s25, {32*7168}')
        return o
    def ntile(n):
        if n < 12: return (n >> 1) & 1, (n >> 2)*2 + (n & 1), False
        return ((n-12) >> 1) & 1, n & 1, True
    def reads(s):
        o = []
        sl = s % S
        for n in range(16):
            mat, u, sh = ntile(n)
            for h in range(2):
                r = (s % 2)*64 + n*4 + 2*h
                v = (vRs if sh else vRo)[sl // 4]
                o.append(f'ds_read_b64_tr_b16 a[{r}:{r+1}], v{v} offset:{(sl%4)*STG + mat*8448 + h*512 + u*32}')
        return o
    def acc(n, m): return ACC + (n*4 + m)*4 if n < 12 else ACC + 192 + ((n-12)*2 + m)*4
    def mfmas(s):
        o = []
        for n in range(16):
            for m in range(4 if n < 12 else 2):
                c = acc(n, m); b = (s % 2)*64 + n*4; a = AR + (s % RA)*16 + m*4
                o.append(f'{MFMA} v[{c}:{c+3}], a[{b}:{b+3}], a[{a}:{a+3}], v[{c}:{c+3}]')
        return o
    stamp(p, 1)
    DB = 4
    emit(p, loadB(0)); emit(p, loadA(0))
    stats_loads(p, 16, 36, 26, ACC)
    p('s_lshr_b32 s21, s3, 1\ns_mul_i32 s21, s21, 14336\ns_lshl_b32 s26, s16, 1\ns_add_u32 s21, s21, s26')
    p('s_and_b32 s26, s3, 1\ns_lshl_b32 s26, s26, 8\ns_add_u32 s21, s21, s26')
    p(f's_lshl_b32 s26, s3, 8\ns_add_u32 m0, s26, {CSL}\nv_lshlrev_b32 v17, 2, v1')
    p('buffer_load_dword v17, s[44:47], s21 offen lds')
    for s in range(1, DB):
        emit(p, loadB(s))
        if s < RA-1: emit(p, loadA(s))
    srd(p, 40, 10, h_off, 112*128*1024)
    p('s_barrier', tok_need=['B0'])
    stamp(p, 2)
    emit(p, reads(0))
    stats_reduce(p, ACC)
    p(f'v_mul_f32 v{ACC+2}, {f32(-LOG2E)}, v{ACC+2}')
    p(f'v_lshlrev_b32 v16, 4, v0\nv_add_u32 v16, {TAB}, v16')
    p(f'ds_write_b128 v16, v[{ACC}:{ACC+3}]')
    p('s_waitcnt lgkmcnt(0)')
    for c in range(ACC, 256): p(f'v_mov_b32 v{c}, 0')
    def step(s, lA, lB, rd):
        p('s_waitcnt lgkmcnt(0)')
        if rd: p('s_barrier', tok_need=[f'B{(s+1)%S}'])
        a = loadA(s+RA-1) if lA else []; b = loadB(s+DB) if lB else []
        vm = [x for pr in zip(b, a) for x in pr] if (a and b) else a + b
        emit(p, interleave(mfmas(s), [(reads(s+1) if rd else [], 0, 50), (vm, 1, 56)]))
    p('s_mov_b32 s48, 3')
    p.loop_begin(f'{name}_loop')
    for s in range(S): step(s, True, True, True)
    p('s_sub_u32 s48, s48, 1\ns_cmp_lg_u32 s48, 0')
    p(f's_cbranch_scc1 {name}_loop')
    p.loop_end()
    for s in range(24, 32): step(s, s+RA-1 < 32, s+DB < 32, s < 31)
    stamp(p, 3)
    p('s_lshl_b32 s20, s3, 10\ns_lshl_b32 s21, s8, 9\ns_add_u32 s20, s20, s21')
    p(f's_add_u32 s20, s20, {TAB}\nv_and_b32 v6, 15, v1\nv_lshl_add_u32 v6, v6, 4, s20\nv_xor_b32 v7, 512, v6')
    SR = 16
    for m in range(4): p(f'ds_read_b128 v[{SR+4*m}:{SR+4*m+3}], v{6+(m>>1)} offset:{256*(m&1)}')
    p(f'v_lshrrev_b32 v6, 4, v1\nv_lshlrev_b32 v6, 4, v6\ns_lshl_b32 s20, s17, 1\ns_lshl_b32 s21, s18, 1')
    p(f's_add_u32 s20, s20, {CSL}\ns_add_u32 s21, s21, {CSL}\nv_add_u32 v7, s21, v6\nv_add_u32 v6, s20, v6')
    p('s_mul_i32 s20, s9, 7\ns_add_u32 s53, s20, 3\ns_lshl_b32 s53, s53, 17\ns_lshl_b32 s21, s8, 2\ns_add_u32 s20, s20, s21\ns_lshl_b32 s50, s20, 17')
    p('s_add_u32 s51, s50, 0x20000\ns_add_u32 s52, s50, 0x40000')
    for b in range(4):
        for t in range(2):
            ng, nu = 4*b + t, 4*b + 2 + t
            va = 7 if b == 3 else 6
            u = (0 if b == 3 else 2*b) + t
            p(f'ds_read_b128 v[8:11], v{va} offset:{u*64}')
            p(f'ds_read_b128 v[12:15], v{va} offset:{512 + u*64}')
            for m in range(4 if b < 3 else 2):
                G, U = acc(ng, m), acc(nu, m); s0 = SR + 4*m
                for q in (0, 2):
                    p(f'v_pk_fma_f32 v[{G+q}:{G+q+1}], v[{8+q}:{9+q}], v[{s0}:{s0+1}], v[{G+q}:{G+q+1}] op_sel_hi:[1,0,1]')
                    p(f'v_pk_fma_f32 v[{U+q}:{U+q+1}], v[{12+q}:{13+q}], v[{s0}:{s0+1}], v[{U+q}:{U+q+1}] op_sel_hi:[1,0,1]')
        for m in range(4 if b < 3 else 2):
            s0 = SR + 4*m
            G0, G1, U0, U1 = acc(4*b, m), acc(4*b+1, m), acc(4*b+2, m), acc(4*b+3, m)
            prs = [(G0, U0), (G0+2, U0+2), (G1, U1), (G1+2, U1+2)]
            for G, U in prs:
                p(f'v_pk_mul_f32 v[{U}:{U+1}], v[{U}:{U+1}], v[{G}:{G+1}]')
                p(f'v_pk_mul_f32 v[{G}:{G+1}], v[{G}:{G+1}], v[{s0+2}:{s0+3}] op_sel_hi:[1,0]')
            for G, U in prs:
                p(f'v_exp_f32 v{G}, v{G}\nv_exp_f32 v{G+1}, v{G+1}')
            for G, U in prs:
                p(f'v_pk_fma_f32 v[{G}:{G+1}], v[{G}:{G+1}], v[{s0}:{s0+1}], v[{s0}:{s0+1}] op_sel:[0,1,1] op_sel_hi:[1,1,1]')
            for G, U in prs:
                p(f'v_rcp_f32 v{G}, v{G}\nv_rcp_f32 v{G+1}, v{G+1}')
            for G, U in prs:
                p(f'v_pk_mul_f32 v[{U}:{U+1}], v[{U}:{U+1}], v[{G}:{G+1}]')
            for d, (G, U) in enumerate(prs):
                p(f'v_cvt_pk_bf16_f32 v{G0+d}, v{U}, v{U+1}')
            p(f'buffer_store_dwordx4 v[{G0}:{G0+3}], v{vA[m>>1]}, s[40:43], s{50+b} offen offset:{1024*(m&1)} {Opt.st_flags}')
    stamp(p, 4)
    stamp_out(p, kidx, 5, 10)
    p.raw(f'{name}_end:')
    p('s_endpgm')
    return kernel(name, p.finish(), 256 + 192, accum=256), CSL + 1024

def k_qkv(name, kidx, x_off, st_off, o_off):
    S = 6; STG = 21632; BO = 9216
    TAB = S*STG
    PL = TAB + 192*16
    EX = (PL + 2*192*4 + 4095) // 4096 * 4096
    ACC = 48
    vA, vH, vB = 4, 5, [6, 7, 8]
    vRA, vRH, vRB = [10, 11], [12, 13], [14, 15]
    CSR = 16
    BIAS = 36
    def pro(p):
        head(p, name, [(10, 'ws'), (12, 'wqkv')])
        p('s_and_b32 s6, s4, 1\ns_lshl_b32 s6, s6, 3\ns_and_b32 s7, s5, 7\ns_add_u32 s6, s6, s7')
        p('s_lshr_b32 s7, s4, 1\ns_lshl_b32 s7, s7, 2\ns_lshr_b32 s8, s5, 3\ns_add_u32 s7, s7, s8')
        p('s_and_b32 s8, s3, 1\ns_lshr_b32 s9, s3, 1')
        p('s_lshl_b32 s20, s6, 13\ns_lshl_b32 s21, s3, 11\ns_add_u32 s20, s20, s21')
        p(f'v_lshl_add_u32 v{vA}, v1, 4, s20')
        p('s_lshl_b32 s16, s6, 3\ns_sub_u32 s16, s16, 9\ns_cmp_lt_u32 s6, 2\ns_cselect_b32 s16, 7, s16')
        p('s_lshl_b32 s20, s16, 10\ns_lshl_b32 s21, s3, 8\ns_add_u32 s20, s20, s21\ns_sub_u32 s20, s20, 2048')
        p(f'v_lshl_add_u32 v{vH}, v1, 2, s20')
        p('v_bfe_u32 v34, v1, 3, 1\nv_lshrrev_b32 v35, 4, v1\nv_lshl_add_u32 v34, v35, 3, v34')
        p('s_lshl_b32 s21, s3, 1\nv_add_u32 v34, s21, v34\nv_mul_u32_u24 v34, 6144, v34')
        p(f'v_and_b32 v35, 7, v1\nv_lshl_add_u32 v34, v35, 4, v34\ns_lshl_b32 s21, s7, 7\nv_add_u32 v{vB[0]}, s21, v34')
        p(f'v_add_u32 v{vB[1]}, 1024, v{vB[0]}\nv_add_u32 v{vB[2]}, 2048, v{vB[0]}')
        p(f's_mul_i32 s21, s8, 4608\nv_lshl_add_u32 v{vRA[0]}, v1, 4, s21')
        p(f'v_lshrrev_b32 v34, 4, v1\nv_mul_u32_u24 v34, 2304, v34\nv_and_b32 v35, 15, v1\nv_lshl_add_u32 v{vRH[0]}, v35, 4, v34')
        p('v_bfe_u32 v34, v1, 3, 2\nv_mul_u32_u24 v34, 3104, v34')
        p('v_bfe_u32 v35, v1, 2, 1\nv_lshl_add_u32 v34, v35, 7, v34\nv_bfe_u32 v35, v1, 5, 1\nv_lshl_add_u32 v34, v35, 8, v34')
        p(f'v_and_b32 v35, 3, v1\nv_lshl_add_u32 v34, v35, 3, v34\ns_lshl_b32 s21, s9, 6\nv_add_u32 v{vRB[0]}, s21, v34')
        for v in (vRA, vRH, vRB): p(f'v_add_u32 v{v[1]}, {3*STG}, v{v[0]}')
        p(f's_mul_i32 s22, s3, 2304\ns_mul_i32 s24, s3, 3104\ns_add_u32 s24, s24, {BO}\ns_mov_b32 s23, 0\ns_mov_b32 s25, 0')
        p('s_lshl_b32 s20, s6, 10\nv_lshl_add_u32 v34, v0, 3, s20\ns_lshl_b32 s20, s16, 7\nv_and_b32 v35, 15, v1\nv_lshl_add_u32 v35, v35, 3, s20')
        p('v_cmp_gt_u32 vcc, 128, v0\nv_cndmask_b32 v9, v35, v34, vcc')
        srd(p, 28, 10, x_off, 4*MB)
        srd(p, 32, 12, 0, 1024*6144)
        srd(p, 36, 10, st_off, 256*1024)
        srd(p, 44, 10, CSQ, 3072*4)
    def loads(s):
        t = f'B{s%S}'; o = (s % S)*STG
        D = lambda x: {'t': x, 'set': t}
        return [[f's_add_u32 m0, s24, {o}', D(f'buffer_load_dwordx4 v{vB[0]}, s[32:35], s25 offen lds')],
                [D(f'buffer_load_dwordx4 v{vB[1]}, s[32:35], s25 offen offset:1024 lds')],
                [D(f'buffer_load_dwordx4 v{vB[2]}, s[32:35], s25 offen offset:2048 lds'), f's_add_u32 s25, s25, {32*6144}'],
                [f's_add_u32 m0, s22, {o}', D(f'buffer_load_dwordx4 v{vA}, s[28:31], s23 offen lds')],
                [D(f'buffer_load_dwordx4 v{vA}, s[28:31], s23 offen offset:1024 lds')],
                [D(f'buffer_load_dword v{vH}, s[28:31], s23 offen offset:2048 lds'), 's_add_u32 s23, s23, 0x20000']]
    def reads(s):
        sl = s % S; o = (sl % 3)*STG; k = sl // 3; F = (s % 2)*44
        A = [f'ds_read_b128 a[{F+4*m}:{F+4*m+3}], v{vRA[k]} offset:{o + (m>>1)*2304 + (m&1)*1024}' for m in range(4)]
        Hh = [f'ds_read_b128 a[{F+16}:{F+19}], v{vRH[k]} offset:{o + 2048}']
        B = [f'ds_read_b64_tr_b16 a[{F+20+4*n+2*h}:{F+21+4*n+2*h}], v{vRB[k]} offset:{o + BO + (n>>1)*1024 + h*512 + (n&1)*32}'
             for n in range(6) for h in range(2)]
        return B[:8] + A[:2] + B[8:10] + A[2:] + B[10:] + Hh
    def acc(n, m): return ACC + (n*4 + m)*4
    HAL = ACC + 96
    def mfmas(s, th):
        F = (s % 2)*44; o = []
        X = lambda m: f'a[{F+4*m}:{F+4*m+3}]'
        W = lambda n: f'a[{F+20+4*n}:{F+23+4*n}]'
        for n in range(6):
            for m in range(4):
                c = acc(n, m)
                a, b = (W(n), X(m)) if n < 4 else (X(m), W(n))
                o.append(f'{MFMA} v[{c}:{c+3}], {a}, {b}, v[{c}:{c+3}]')
            if (n >> 1) == 1 + th:
                c = HAL + (n & 1)*4
                a, b = (W(n), X(4)) if n < 4 else (X(4), W(n))
                o.append(f'{MFMA} v[{c}:{c+3}], {a}, {b}, v[{c}:{c+3}]')
        return o
    def body(p, th):
        L = f'{name}_t{th}'
        stamp(p, 1)
        emit(p, loads(0))
        stats_loads(p, 9, 36, 26, ACC)
        for s in range(1, S): emit(p, loads(s))
        p('s_lshl_b32 s20, s7, 8\ns_lshl_b32 s21, s9, 7\ns_add_u32 s20, s20, s21\ns_add_u32 s21, s20, 4096\ns_add_u32 s26, s20, 8192')
        p('v_lshrrev_b32 v34, 4, v1\nv_lshlrev_b32 v34, 4, v34\nv_and_b32 v35, 15, v1\nv_lshlrev_b32 v35, 2, v35')
        for n in range(4): p(f'buffer_load_dwordx4 v[{CSR+4*n}:{CSR+4*n+3}], v34, s[44:47], s{20+(n>>1)} offen offset:{64*(n&1)}')
        for t in range(2): p(f'buffer_load_dword v{32+t}, v35, s[44:47], s26 offen offset:{64*t}')
        srd(p, 40, 10, o_off, 4*MB)
        p(f'v_lshrrev_b32 v34, 4, v1\nv_lshlrev_b32 v34, 2, v34\nv_and_b32 v35, 15, v1\nv_sub_u32 v34, v35, v34\nv_mov_b32 v35, {f32(-1e30)}')
        for i in range(4):
            p(f'v_subrev_u32 v{BIAS+8}, {i}, v34')
            p(f'v_cmp_gt_u32 vcc, 8, v{BIAS+8}\nv_cndmask_b32 v{BIAS+4+i}, v35, 0, vcc')
            p(f'v_cmp_gt_i32 vcc, -8, v{BIAS+8}\nv_cndmask_b32 v{BIAS+i}, v35, 0, vcc')
        if th == 0:
            p('s_cmp_lt_u32 s6, 2\ns_cselect_b64 vcc, -1, 0')
            for i in range(4): p(f'v_cndmask_b32 v{BIAS+8+i}, v{BIAS+i}, v35, vcc')
        p('s_barrier', tok_need=['B0'])
        stamp(p, 2)
        emit(p, reads(0))
        stats_reduce(p, ACC)
        p(f'v_mov_b32 v{ACC+1}, v{ACC+2}\nv_mul_f32 v{ACC+2}, {f32(LOG2E * 32**-0.5)}, v{ACC+2}')
        p(f'v_min_u32 v34, 191, v0\nv_lshlrev_b32 v35, 2, v34\nv_lshlrev_b32 v34, 4, v34\nv_add_u32 v34, {TAB}, v34\nv_add_u32 v35, {PL}, v35')
        p(f'ds_write_b128 v34, v[{ACC}:{ACC+3}]\nds_write_b32 v35, v{ACC}\nds_write_b32 v35, v{ACC+1} offset:768')
        p('s_waitcnt lgkmcnt(0)')
        for c in range(ACC, HAL+8): p(f'v_mov_b32 v{c}, 0')
        def step(s, ld, rd):
            p('s_waitcnt lgkmcnt(0)')
            if rd: p('s_barrier', tok_need=[f'B{(s+1)%S}'])
            emit(p, interleave(mfmas(s, th), [(reads(s+1) if rd else [], 0, 22), (loads(s+S) if ld else [], 1, 26)]))
        p('s_mov_b32 s48, 4')
        p.loop_begin(f'{L}_loop')
        for s in range(S): step(s, True, True)
        p('s_sub_u32 s48, s48, 1\ns_cmp_lg_u32 s48, 0')
        p(f's_cbranch_scc1 {L}_loop')
        p.loop_end()
        for s in range(24, 32): step(s, s+S < 32, s < 31)
        stamp(p, 3)
        Q = 160; Kf = 176; V = [196, 206]
        SL = 216; SP = 236
        P = 6; ONE = 244
        p(f'v_and_b32 v6, 15, v1\nv_lshlrev_b32 v6, 4, v6\nv_add_u32 v6, {TAB}, v6')
        p(f'v_lshrrev_b32 v7, 4, v1\nv_lshlrev_b32 v7, 4, v7\nv_add_u32 v7, {PL}, v7')
        p(f's_lshl_b32 s20, s3, 11\ns_add_u32 s20, s20, {EX}\nv_lshl_add_u32 v8, v1, 4, s20\nv_xor_b32 v9, 2048, v8')
        for m in range(4): p(f'ds_read_b128 v[{SL+4*m}:{SL+4*m+3}], v6 offset:{(64*th + 16*m)*16}')
        if th == 0: p(f'ds_read_b128 v[{SL+16}:{SL+19}], v6 offset:{128*16}')
        for d in range(4): p(f'v_mov_b32 v{ONE+d}, 0x3f803f80')
        def fold_T(c0, c1, cs, st, sel, dst):
            for t, c in enumerate((c0, c1)):
                for q in (0, 2):
                    p(f'v_pk_fma_f32 v[{c+q}:{c+q+1}], v[{cs+4*t+q}:{cs+4*t+q+1}], v[{st}:{st+1}], v[{c+q}:{c+q+1}] op_sel_hi:[1,0,1]')
                    if sel == 1: p(f'v_pk_mul_f32 v[{c+q}:{c+q+1}], v[{c+q}:{c+q+1}], v[{st}:{st+1}] op_sel:[0,1] op_sel_hi:[1,1]')
                    else: p(f'v_pk_mul_f32 v[{c+q}:{c+q+1}], v[{c+q}:{c+q+1}], v[{st+2}:{st+3}] op_sel_hi:[1,0]')
                    p(f'v_cvt_pk_bf16_f32 v{dst+2*t+(q>>1)}, v{c+q}, v{c+q+1}')
        def fold_V(c0, c1, tok0, d0, d1):
            p(f'ds_read_b128 v[{SP}:{SP+3}], v7 offset:{tok0*4}\nds_read_b128 v[{SP+4}:{SP+7}], v7 offset:{768 + tok0*4}')
            for t, (c, d) in enumerate(((c0, d0), (c1, d1))):
                sel = 'op_sel_hi:[1,0,1]' if t == 0 else 'op_sel:[0,1,0] op_sel_hi:[1,1,1]'
                for q in (0, 2):
                    p(f'v_pk_fma_f32 v[{c+q}:{c+q+1}], v[{SP+q}:{SP+q+1}], v[32:33], v[{c+q}:{c+q+1}] {sel}')
                    p(f'v_pk_mul_f32 v[{c+q}:{c+q+1}], v[{c+q}:{c+q+1}], v[{SP+4+q}:{SP+5+q}]')
                    p(f'v_cvt_pk_bf16_f32 v{d+(q>>1)}, v{c+q}, v{c+q+1}')
        doK = lambda m: fold_T(acc(2, m), acc(3, m), CSR+8, SL+4*m, 1, Kf+4*(m+1))
        doQ = lambda m: fold_T(acc(0, m), acc(1, m), CSR, SL+4*m, 2, Q+4*m)
        doV = lambda m: fold_V(acc(4, m), acc(5, m), 64*th+16*m, V[0]+2*(m+1), V[1]+2*(m+1))
        if th == 0:
            doK(3); doV(3)
            p(f'ds_write_b128 v8, v[{Kf+16}:{Kf+19}]')
            p(f'ds_write_b64 v8, v[{V[0]+8}:{V[0]+9}] offset:1024\nds_write_b64 v8, v[{V[1]+8}:{V[1]+9}] offset:1032')
            fold_T(HAL, HAL+4, CSR+8, SL+16, 1, Kf)
            rest = [0, 1, 2]
        else:
            fold_V(HAL, HAL+4, 128, 12, 14)
            p('ds_write_b128 v8, v[12:15] offset:1024')
            rest = [0, 1, 2, 3]
        for m in rest: doK(m); doV(m)
        p('s_waitcnt lgkmcnt(0)\ns_barrier')
        if th == 1: p(f'ds_read_b128 v[{Kf}:{Kf+3}], v9')
        p(f'ds_read_b64 v[{V[0]}:{V[0]+1}], v9 offset:1024\nds_read_b64 v[{V[1]}:{V[1]+1}], v9 offset:1032')
        for m in range(4): doQ(m)
        order = [1, 2, 3, 0]
        Sx = lambda m: ACC + 8*m
        for m in order:
            bp = BIAS+8 if (m == 0 and th == 0) else BIAS
            p(f'{MFMA} v[{Sx(m)}:{Sx(m)+3}], v[{Kf+4*m}:{Kf+4*m+3}], v[{Q+4*m}:{Q+4*m+3}], v[{bp}:{bp+3}]')
            p(f'{MFMA} v[{Sx(m)+4}:{Sx(m)+7}], v[{Kf+4*m+4}:{Kf+4*m+7}], v[{Q+4*m}:{Q+4*m+3}], v[{BIAS+4}:{BIAS+7}]')
        MX = ACC + 32
        for m in order:
            s = Sx(m); x = MX + 2*m
            p(f'v_max3_f32 v{x}, v{s}, v{s+1}, v{s+2}\nv_max3_f32 v{x+1}, v{s+3}, v{s+4}, v{s+5}')
            p(f'v_max3_f32 v{x}, v{x}, v{s+6}, v{s+7}\nv_max_f32 v{x}, v{x}, v{x+1}\nv_mov_b32 v{x+1}, v{x}')
        for op in ('16', '32'):
            for m in order: p(f'v_permlane{op}_swap_b32 v{MX+2*m}, v{MX+2*m+1}')
            for m in order:
                p(f'v_max_f32 v{MX+2*m}, v{MX+2*m}, v{MX+2*m+1}')
                if op == '16': p(f'v_mov_b32 v{MX+2*m+1}, v{MX+2*m}')
        PB = ACC + 40; OA = ACC + 56
        p('s_lshl_b32 s20, s7, 1\ns_add_u32 s20, s20, s9\ns_lshl_b32 s20, s20, 17\ns_lshl_b32 s21, s6, 13\ns_add_u32 s20, s20, s21')
        p(f's_add_u32 s20, s20, {4096*th}\nv_lshlrev_b32 v6, 4, v1')
        for m in order:
            s = Sx(m); x = MX + 2*m
            for q in range(0, 8, 2):
                p(f'v_pk_add_f32 v[{s+q}:{s+q+1}], v[{s+q}:{s+q+1}], v[{x}:{x+1}] op_sel_hi:[1,0] neg_lo:[0,1] neg_hi:[0,1]')
            for q in range(8): p(f'v_exp_f32 v{s+q}, v{s+q}')
            for q in range(4): p(f'v_cvt_pk_bf16_f32 v{PB+4*m+q}, v{s+2*q}, v{s+2*q+1}')
            o = OA + 12*m; pb = f'v[{PB+4*m}:{PB+4*m+3}]'
            p(f'{MFMA} v[{o+8}:{o+11}], v[{ONE}:{ONE+3}], {pb}, 0')
            for t in range(2): p(f'{MFMA} v[{o+4*t}:{o+4*t+3}], v[{V[t]+2*m}:{V[t]+2*m+3}], {pb}, 0')
        for m in order:
            o = OA + 12*m
            p(f'v_rcp_f32 v{o+8}, v{o+8}')
            for q in range(0, 8, 2): p(f'v_pk_mul_f32 v[{o+q}:{o+q+1}], v[{o+q}:{o+q+1}], v[{o+8}:{o+9}] op_sel_hi:[1,0]')
            for q in range(4): p(f'v_cvt_pk_bf16_f32 v{Q+4*m+q}, v{o+2*q}, v{o+2*q+1}')
            p(f'buffer_store_dwordx4 v[{Q+4*m}:{Q+4*m+3}], v6, s[40:43], s20 offen offset:{1024*m} {Opt.st_flags}')
        stamp(p, 4)
        stamp_out(p, kidx, 5, 10)
        p('s_endpgm')
    p0 = Prog(); pro(p0)
    p0('s_waitcnt lgkmcnt(0)\ns_cmp_eq_u32 s8, 1')
    p0.raw(f'    s_cbranch_scc1 {name}_t1')
    pa = Prog(); body(pa, 0)
    pb = Prog(); pb.raw(f'{name}_t1:'); body(pb, 1)
    txt = p0.finish() + pa.finish() + pb.finish() + f'{name}_end:\n    s_endpgm\n'
    assert EX % 4096 == 0 or True
    return kernel(name, txt, 248 + 88, accum=248), EX + 8192, EX

def build(header=''):
    ks = []; ls = []
    def add(name, r):
        ks.append(r[0]); ls.append((name, 256, 256, r[1]))
    add('pre_kernel', k_pre('pre_kernel', 0))
    add('qkv1_kernel', k_qkv('qkv1_kernel', 1, XF0, ST[0], O1))
    add('wo1_kernel', k_proj('wo1_kernel', 2, 1024, O1, 'wo', XF0, X1, ST[1]))
    add('gu1_kernel', k_gu('gu1_kernel', 3, X1, ST[1], H1))
    add('dn1_kernel', k_proj('dn1_kernel', 4, 3584, H1, 'wd', X1, X2, ST[2]))
    add('qkv2_kernel', k_qkv('qkv2_kernel', 5, X2, ST[2], O2))
    add('wo2_kernel', k_proj('wo2_kernel', 6, 1024, O2, 'wo', X2, X3, ST[3]))
    add('gu2_kernel', k_gu('gu2_kernel', 7, X3, ST[3], H2))
    add('dn2_kernel', k_proj('dn2_kernel', 8, 3584, H2, 'wd', X3, None, None))
    return module(ls, ks, header)

if __name__ == '__main__':
    import argparse
    ap = argparse.ArgumentParser()
    ap.add_argument('out'); ap.add_argument('--stamps', action='store_true'); ap.add_argument('--st', default='')
    a = ap.parse_args()
    Opt.stamps = a.stamps; Opt.st_flags = a.st
    ref = open(os.path.join(os.path.dirname(os.path.abspath(__file__)), '..', 'interleave_layers__sliding_local_dilated__swiglu_ffn__prompt.s.ref')).read()
    hdr = ''.join(l + '\n' for l in ref.split('\n') if l.startswith(';   offset') or l.startswith('; Kernarg'))
    hdr += '; Generated by tools/gen.py (hand-written generator).\n'
    open(a.out, 'w').write(build(hdr))
```
